```python
import torch

def _softmax(x, axis=-1):
    return torch.softmax(x, dim=axis)
def _gelu(x):
    return torch.nn.functional.gelu(x, approximate="tanh")
def _silu(x):
    return torch.nn.functional.silu(x)
def _sigmoid(x):
    return torch.sigmoid(x)
def _layernorm(x, axis=-1, eps=1e-5):
    m = x.mean(dim=axis, keepdim=True)
    v = x.var(dim=axis, keepdim=True, unbiased=False)
    return (x - m) / torch.sqrt(v + eps)
def _scatter_add(tgt, idx, src, axis=0):
    return tgt.clone().index_add_(axis, idx, src)
def _segment_sum(src, seg, n):
    out = torch.zeros((n,) + src.shape[1:], dtype=src.dtype)
    return out.index_add_(0, seg, src)
def _pad(x, pw):
    flat = tuple(v for pair in reversed(pw) for v in pair)
    return torch.nn.functional.pad(x, flat)

kernel_name = 'gated_mix__grouped_kv_mqa__spectral_gfnet__prompt'

def setup_inputs():

    _w = (lambda a: (lambda t: t.to(torch.bfloat16) if t.is_floating_point() else t)(torch.as_tensor(a)))
    def _A_setup():
        B, S, D, H = 1, 2048, 512, 32
        Dh = D // H
        return {
            "x": _w((lambda *s: torch.randn(*s, dtype=torch.bfloat16) * 0.05)(B, S, D)),
            "wq": _w((lambda *s: torch.randn(*s, dtype=torch.bfloat16) * 0.8)(D, H * Dh)),
            "wk": _w((lambda *s: torch.randn(*s, dtype=torch.bfloat16) * 0.8)(D, Dh)),
            "wv": _w((lambda *s: torch.randn(*s, dtype=torch.bfloat16) * 0.05)(D, Dh)),
            "wo": _w((lambda *s: torch.randn(*s, dtype=torch.bfloat16) * 0.05)(H * Dh, D)),
        }
    _A_in = _A_setup()

    def _B_setup():
        B, S, D = 1, 2048, 512
        Df = D // 2 + 1
        return {
            "x": _w((lambda *s: torch.randn(*s, dtype=torch.bfloat16) * 0.05)(B, S, D)),
            "w_r": _w((lambda *s: torch.randn(*s, dtype=torch.bfloat16) * 0.4)(S, Df) * 0.02),
            "w_i": _w((lambda *s: torch.randn(*s, dtype=torch.bfloat16) * 0.8)(S, Df) * 0.02),
        }
    _B_in = _B_setup()

    return {
        "A_x": _A_in["x"],
        "A_wq": _A_in["wq"],
        "A_wk": _A_in["wk"],
        "A_wv": _A_in["wv"],
        "A_wo": _A_in["wo"],
        "B_x": _B_in["x"],
        "B_w_r": _B_in["w_r"],
        "B_w_i": _B_in["w_i"],
        "gate_w": _w((lambda *s: torch.randn(*s, dtype=torch.bfloat16) * 0.05)(512) * 16.0),
    }

def reference(A_x, A_wq, A_wk, A_wv, A_wo, B_x, B_w_r, B_w_i, gate_w):
    def _A_ref(x, wq, wk, wv, wo):
        B, S, D = x.shape
        H = 32
        Dh = D // H
        q = (lambda x, *d: x.permute(*d))((x @ wq).reshape(B, S, H, Dh), 0, 2, 1, 3)
        k = x @ wk
        v = x @ wv
        scores = torch.einsum("bhqd,bkd->bhqk", q, k) * (Dh ** -0.5)
        p = _softmax(scores, axis=-1)
        o = torch.einsum("bhqk,bkd->bhqd", p, v)
        return (lambda x, *d: x.permute(*d))(o, 0, 2, 1, 3).reshape(B, S, H * Dh) @ wo

    def _B_ref(x, w_r, w_i):
        B, S, D = x.shape
        X = (lambda x, axes=(-2,-1): torch.fft.rfft2(x.float(), dim=axes))(x, axes=(-2, -1))
        W = w_r + 1j * w_i
        X = X * W
        y = (lambda x, s, axes=(-2,-1): torch.fft.irfft2(x, s=s, dim=axes).to(torch.bfloat16))(X, (S, D), axes=(-2, -1))
        return y

    x = A_x
    g = _sigmoid((x * gate_w).sum(-1, keepdims=True))
    a = _A_ref(x, A_wq, A_wk, A_wv, A_wo)
    b = _B_ref(x, B_w_r, B_w_i)
    return g * a + (1 - g) * b
```

```python
class Asm:
    def __init__(self):
        self.lines=[]
        self.uid=0
    def __call__(self,s,*a):
        for l in s.strip("\n").split("\n"):
            l=l.strip()
            if l: self.lines.append("    "+l if not l.endswith(":") else l)
    def label(self,base):
        self.uid+=1
        return f"L_{base}_{self.uid}"
    def comment(self,s): self.lines.append("    ; "+s)
    def text(self): return "\n".join(self.lines)+"\n"

def vr(b,n=1):
    return f"v{b}" if n==1 else f"v[{b}:{b+n-1}]"
def sr(b,n=1):
    return f"s{b}" if n==1 else f"s[{b}:{b+n-1}]"

def kernel_begin(A,name):
    A.lines.append(f".globl {name}")
    A.lines.append(".p2align 8")
    A.lines.append(f".type {name},@function")
    A.lines.append(f"{name}:")

def kernel_desc(name,nvgpr,nsgpr=96):
    acc=(nvgpr+3)//4*4
    return f""".amdhsa_kernel {name}
  .amdhsa_next_free_vgpr {nvgpr}
  .amdhsa_next_free_sgpr {nsgpr}
  .amdhsa_accum_offset {acc}
  .amdhsa_group_segment_fixed_size 0
  .amdhsa_kernarg_size 96
  .amdhsa_user_sgpr_count 2
  .amdhsa_user_sgpr_kernarg_segment_ptr 1
  .amdhsa_system_sgpr_workgroup_id_x 1
.end_amdhsa_kernel
"""
def srd(A,d,base,nbytes,off=0):
    if off:
        A(f"s_add_u32 s{d}, s{base}, 0x{off:x}")
        A(f"s_addc_u32 s{d+1}, s{base+1}, 0")
    else:
        A(f"s_mov_b32 s{d}, s{base}")
        A(f"s_mov_b32 s{d+1}, s{base+1}")
    A(f"s_mov_b32 s{d+2}, 0x{nbytes:x}")
    A(f"s_mov_b32 s{d+3}, 0x00020000")
import struct
def f32hex(x):
    return "0x%08x"%struct.unpack("<I",struct.pack("<f",x))[0]
```

```python
from asmlib import *
from layout import *

LOG2E=1.4426950408889634
def gen_proj(A, name="proj_kernel"):
    kernel_begin(A,name)
    Lend=A.label("end")
    Lside=A.label("side")
    A(f"""
    s_cmp_ge_u32 s2, 256
    s_cbranch_scc1 {Lend}
    s_load_dwordx8 s[4:11], s[0:1], 0
    s_load_dwordx4 s[40:43], s[0:1], 48   ; w_r, w_i
    s_load_dwordx2 s[44:45], s[0:1], 64   ; gate_w
    s_load_dwordx2 s[46:47], s[0:1], 88   ; ws
    s_load_dwordx2 s[54:55], s[0:1], 32   ; wo
    v_lshrrev_b32 v1, 6, v0
    v_and_b32 v2, 63, v0                  ; lane
    s_and_b32 s50, s2, 31                 ; rb
    s_lshr_b32 s51, s2, 5                 ; cb
    v_readfirstlane_b32 s12, v1           ; wave
    v_and_b32 v16, 31, v2                 ; n
    v_lshrrev_b32 v17, 5, v2              ; h2
    s_waitcnt lgkmcnt(0)
    """)
    srd(A,16,4,2048*1024)
    srd(A,20,6,512*1024)
    srd(A,24,46,WS_END)
    A(f"""
    s_cmp_ge_u32 s12, 8
    s_cbranch_scc1 {Lside}
    """)
    A(f"""
    s_and_b32 s13, s12, 1
    s_lshl_b32 s13, s13, 3                ; 8*(w&1)
    v_xor_b32 v3, s13, v2                 ; lane ^ 8(w&1)
    s_lshl_b32 s14, s12, 3                ; i0 = 8w
    """)
    for j in range(8):
        A(f"""
        s_add_u32 s15, s14, {j}
        s_and_b32 s28, s15, 31
        s_lshl_b32 s28, s28, 16           ; n1*64*1024
        s_lshr_b32 s29, s15, 5
        s_lshl_b32 s30, s50, 1
        s_add_u32 s29, s29, s30
        s_lshl_b32 s29, s29, 10
        s_add_u32 s28, s28, s29
        s_lshl_b32 m0, s15, 10
        v_xor_b32 v4, {j}, v3
        v_lshlrev_b32 v4, 4, v4
        buffer_load_dwordx4 v4, s[16:19], s28 offen lds
        """)
    A(f"""
    v_lshrrev_b32 v5, 3, v2               ; L>>3
    v_lshlrev_b32 v5, 10, v5
    v_and_b32 v6, 7, v2
    v_lshrrev_b32 v7, 4, v2
    v_and_b32 v7, 1, v7
    v_lshlrev_b32 v7, 2, v7
    v_xor_b32 v6, v6, v7
    v_lshl_add_u32 v5, v6, 4, v5          ; voffset
    s_lshl_b32 s28, s12, 16               ; blk0*8192 = 8w*8192
    s_lshl_b32 s29, s51, 7
    s_add_u32 s28, s28, s29
    s_lshl_b32 s30, s12, 13               ; blk0*1024
    s_add_u32 s30, s30, 0x10000
    """)
    for j in range(8):
        A(f"""
        s_add_u32 m0, s30, {j*1024}
        s_add_u32 s31, s28, {j*8192}
        buffer_load_dwordx4 v5, s[20:23], s31 offen lds
        """)
    A(f"""
    s_lshr_b32 s32, s12, 1
    s_and_b32 s32, s32, 1                 ; nt
    s_and_b32 s33, s12, 1                 ; mt
    """)
    def xaddr():
        A(f"""
        s_lshl_b32 s34, s32, 5
        v_add_u32 v18, s34, v16               ; row i
        v_and_b32 v19, 15, v18
        v_xor_b32 v19, v19, v17               ; (row&15)^h2
        v_lshlrev_b32 v20, 10, v18            ; row*1024
        """)
        for b in range(8):
            A(f"""
            v_xor_b32 v21, {2*b}, v19
            v_lshl_add_u32 v{8+b}, v21, 4, v20
            """)
    xaddr()
    Lfft=A.label("fft")
    A(f"""
    s_cmp_ge_u32 s12, 4
    s_cbranch_scc1 {Lfft}
    """)
    BAR2=12
    def bar2():
        L=A.label("nob2")
        A(f"s_cmp_ge_u32 s51, 2")
        A(f"s_cbranch_scc1 {L}")
        A("s_barrier")
        A(f"{L}:")
    A(f"""
    v_lshrrev_b32 v21, 4, v2              ; G
    v_and_b32 v23, 1, v21                 ; nh
    v_and_b32 v24, 15, v2                 ; i
    v_lshrrev_b32 v25, 2, v24             ; r
    v_and_b32 v26, 3, v24                 ; c
    v_lshl_add_u32 v27, v17, 3, v25       ; 8*h2 + r
    v_lshlrev_b32 v27, 7, v27             ; *128
    v_lshlrev_b32 v28, 5, v23             ; nh*32
    v_lshl_add_u32 v28, v26, 3, v28       ; + c*8
    s_lshl_b32 s34, s33, 6
    v_add_u32 v28, s34, v28               ; + mt*64
    v_lshrrev_b32 v29, 1, v25
    v_lshlrev_b32 v29, 6, v29
    v_xor_b32 v28, v28, v29
    v_add_u32 v22, v27, v28
    v_add_u32 v22, 0x10000, v22
    s_waitcnt vmcnt(0)
    s_barrier
    """)
    ACC=32; DEPTH=4; AB=48
    def issue(ks):
        sl=ks%DEPTH; a=AB+8*sl; b=a+4
        A(f"ds_read_b64_tr_b16 v[{a}:{a+1}], v22 offset:{ks*2048}")
        A(f"ds_read_b64_tr_b16 v[{a+2}:{a+3}], v22 offset:{ks*2048+512}")
        A(f"ds_read_b128 v[{b}:{b+3}], v{8+(ks&7)} offset:{(ks>>3)*256}")
    for ks in range(DEPTH): issue(ks)
    for ks in range(32):
        sl=ks%DEPTH; a=AB+8*sl; b=a+4
        rem=min(DEPTH-1,31-ks)
        A(f"s_waitcnt lgkmcnt({3*rem})")
        c="0" if ks==0 else f"v[{ACC}:{ACC+15}]"
        A(f"v_mfma_f32_32x32x16_bf16 v[{ACC}:{ACC+15}], v[{a}:{a+3}], v[{b}:{b+3}], {c}")
        if ks+DEPTH<32: issue(ks+DEPTH)
        if ks==BAR2: bar2()
    A(f"""
    s_mov_b32 s34, {f32hex(QSCALE)}
    s_lshl_b32 s35, s50, 16
    s_lshl_b32 s36, s51, 7                ; 4cb*32
    s_add_u32 s35, s35, s36
    s_lshl_b32 s36, s33, 6                ; 2mt*32
    s_add_u32 s35, s35, s36
    v_lshl_add_u32 v21, v17, 4, v20       ; row*1024 + h2*16
    s_nop 7
    s_nop 3
    """)
    for r in range(16):
        A(f"v_mul_f32 v{ACC+r}, s34, v{ACC+r}")
    A(f"v_mul_f32 v23, v{ACC}, v{ACC}")
    A(f"v_mul_f32 v24, v{ACC+8}, v{ACC+8}")
    for r in range(1,8):
        A(f"v_fmac_f32 v23, v{ACC+r}, v{ACC+r}")
        A(f"v_fmac_f32 v24, v{ACC+8+r}, v{ACC+8+r}")
    for r in range(8):
        A(f"v_cvt_pk_bf16_f32 v{AB+r}, v{ACC+2*r}, v{ACC+2*r+1}")
    A(f"""
    buffer_store_dwordx4 v[{AB}:{AB+3}], v21, s[24:27], s35 offen
    buffer_store_dwordx4 v[{AB+4}:{AB+7}], v21, s[24:27], s35 offen offset:32
    v_permlane32_swap_b32 v23, v24
    v_lshlrev_b32 v25, 7, v18             ; row*128
    v_lshl_add_u32 v25, v17, 2, v25
    v_add_f32 v23, v23, v24
    s_lshr_b32 s36, s35, 3
    s_add_u32 s36, s36, 0x{QN:x}
    buffer_store_dword v23, v25, s[24:27], s36 offen
    s_branch {Lend}
    """)
    A(f"{Lfft}:")
    FP=48; FC=56; FR=64
    A(f"""
    v_lshrrev_b32 v21, 3, v16
    v_and_b32 v21, 1, v21                 ; part
    v_and_b32 v22, 7, v16
    v_lshrrev_b32 v23, 4, v16
    v_lshl_add_u32 v22, v23, 3, v22       ; kc
    s_lshl_b32 s34, s51, 5
    s_lshl_b32 s35, s33, 4
    s_add_u32 s34, s34, s35
    v_add_u32 v22, s34, v22               ; c
    v_cvt_f32_u32 v24, v21
    v_mul_f32 v24, 0x3e800000, v24        ; phi
    v_lshl_add_u32 v25, v22, 1, v21       ; 2c+part
    v_cmp_eq_u32 vcc, 1, v25
    v_mov_b32 v26, 0x100
    s_nop 0
    v_cndmask_b32 v22, v22, v26, vcc
    v_cndmask_b32_e64 v24, v24, 0, vcc
    v_cvt_f32_u32 v26, v22                ; k
    v_mul_f32 v26, 0x3b000000, v26        ; k/512
    v_lshlrev_b32 v27, 3, v17
    v_cvt_f32_u32 v27, v27                ; 8*h2
    v_fma_f32 v28, v26, v27, v24
    v_mul_f32 v29, 0x41800000, v26        ; k/32
    v_cos_f32 v30, v29
    s_nop 0
    v_add_f32 v30, v30, v30               ; K2
    """)
    for j in range(8):
        A(f"v_add_f32 v31, v28, v29")
        A(f"v_cos_f32 v{FP+j}, v28")
        A(f"v_cos_f32 v{FC+j}, v31")
        if j<7: A(f"v_add_f32 v28, v28, v26")
    A("s_nop 0")
    for j in range(4):
        A(f"v_cvt_pk_bf16_f32 v{FR+j}, v{FP+2*j}, v{FP+2*j+1}")
    for j in range(4):
        A(f"v_cvt_pk_bf16_f32 v{FR+4+j}, v{FC+2*j}, v{FC+2*j+1}")
    A("""
    s_waitcnt vmcnt(0)
    s_barrier
    """)
    BB=72
    def issueB(ks,base=BB):
        b=base+4*(ks%DEPTH)
        A(f"ds_read_b128 v[{b}:{b+3}], v{8+(ks&7)} offset:{(ks>>3)*256}")
    for ks in range(DEPTH): issueB(ks)
    prev,cur=FP,FC
    for ks in range(32):
        b=BB+4*(ks%DEPTH); a=FR+4*(ks&1)
        rem=min(DEPTH-1,31-ks)
        A(f"s_waitcnt lgkmcnt({rem})")
        c="0" if ks==0 else f"v[{ACC}:{ACC+15}]"
        A(f"v_mfma_f32_32x32x16_bf16 v[{ACC}:{ACC+15}], v[{a}:{a+3}], v[{b}:{b+3}], {c}")
        if ks+DEPTH<32: issueB(ks+DEPTH)
        if ks+2<32:
            for j in range(8):
                A(f"v_fma_f32 v{prev+j}, v30, v{cur+j}, -v{prev+j}")
            for j in range(4):
                A(f"v_cvt_pk_bf16_f32 v{a+j}, v{prev+2*j}, v{prev+2*j+1}")
            prev,cur=cur,prev
        if ks==BAR2: bar2()
    A(f"""
    s_lshl_b32 s35, s34, 13               ; c0*8192
    s_lshl_b32 s36, s50, 8                ; 64rb*4
    s_add_u32 s35, s35, s36
    s_add_u32 s35, s35, 0x{X1T:x}
    v_lshlrev_b32 v21, 2, v18             ; row*4
    v_lshl_add_u32 v21, v17, 15, v21      ; + h2*4*8192
    s_nop 7
    s_nop 3
    """)
    idx=0
    for g in range(2):
        for r in range(4):
            A(f"v_cvt_pk_bf16_f32 v{FP+idx}, v{ACC+8*g+r}, v{ACC+8*g+4+r}")
            idx+=1
    idx=0
    for g in range(2):
        for r in range(4):
            kc=8*g+r
            A(f"s_add_u32 s36, s35, {kc*8192}")
            A(f"buffer_store_dword v{FP+idx}, v21, s[24:27], s36 offen")
            idx+=1
    A(f"s_branch {Lend}")
    A(f"{Lside}:")
    Lw=A.label("wtr"); Lgate=A.label("gate"); Lkv=A.label("kv"); Lwsp=A.label("wsp"); Ltab=A.label("tab"); Lwot=A.label("wot")
    A(f"""
    s_cmp_ge_u32 s12, 12
    s_cbranch_scc1 {Lw}
    s_cmp_lt_u32 s51, 2
    s_cbranch_scc1 {Lkv}
    s_mov_b32 s52, s51
    s_cmp_eq_u32 s12, 11
    s_cbranch_scc1 {Lgate}
    s_cmp_ge_u32 s51, 4
    s_cbranch_scc1 {Lwot}
    s_sub_u32 s52, s51, 2
    s_cmp_eq_u32 s12, 10
    s_cbranch_scc1 {Lgate}
    s_cmp_eq_u32 s51, 3
    s_cbranch_scc1 {Ltab}
    s_cmp_eq_u32 s12, 8
    s_cbranch_scc1 {Lwsp}
    s_branch {Lend}
    """)
    A(f"""
    {Lwot}:
    s_cmp_ge_u32 s12, 10
    s_cbranch_scc1 {Lend}
    """)
    srd(A,28,54,512*1024)
    A(f"""
    s_sub_u32 s13, s2, 128
    s_lshl_b32 s13, s13, 1
    s_add_u32 s13, s13, s12
    s_sub_u32 s13, s13, 8
    s_lshl_b32 s13, s13, 1                ; F0
    s_lshr_b32 s14, s13, 5                ; nb
    s_and_b32 s15, s13, 31                ; ks0
    s_lshl_b32 s15, s15, 14
    s_lshl_b32 s14, s14, 6
    s_add_u32 s15, s15, s14
    v_lshlrev_b32 v3, 1, v16
    v_lshl_add_u32 v3, v17, 12, v3        ; 4h2*1024 + n*2
    """)
    for f in range(2):
        for jh in range(2):
            A(f"s_add_u32 s14, s15, {f*16384+jh*8192}")
            for jl in range(4):
                A(f"buffer_load_ushort v{20+8*f+4*jh+jl}, v3, s[28:31], s14 offen offset:{1024*jl}")
    A(f"""
    v_lshlrev_b32 v4, 4, v2
    s_lshl_b32 s13, s13, 10
    s_add_u32 s13, s13, 0x{WOT:x}
    s_barrier
    s_waitcnt vmcnt(0)
    """)
    for r in range(8):
        A(f"v_lshl_or_b32 v{40+r}, v{21+2*r}, 16, v{20+2*r}")
    A(f"""
    buffer_store_dwordx4 v[40:43], v4, s[24:27], s13 offen
    buffer_store_dwordx4 v[44:47], v4, s[24:27], s13 offen offset:1024
    s_branch {Lend}
    """)
    A(f"{Lw}:")
    srd(A,28,40,2048*514)
    srd(A,32,42,2048*514)
    A(f"""
    s_and_b32 s13, s2, 3                  ; cg
    s_lshr_b32 s14, s2, 2                 ; pb
    s_lshr_b32 s15, s14, 3                ; w'
    s_and_b32 s36, s14, 7                 ; q8
    s_and_b32 s37, s15, 1                 ; kh
    s_lshr_b32 s38, s15, 1                ; mq
    s_lshl_b32 s37, s37, 4
    s_and_b32 s39, s36, 1
    s_lshl_b32 s39, s39, 3
    s_add_u32 s37, s37, s39               ; 16kh+8(q8&1)
    s_sub_u32 s39, s12, 12
    s_lshl_b32 s39, s39, 1                ; i0
    s_add_u32 s37, s37, s39               ; k1 for i0
    s_lshl_b32 s38, s38, 4
    s_lshr_b32 s48, s36, 1
    s_lshl_b32 s48, s48, 2
    s_add_u32 s38, s38, s48               ; k2 for r=0
    s_lshl_b32 s38, s38, 5
    s_add_u32 s37, s37, s38               ; f0
    s_mul_i32 s37, s37, 514
    s_lshl_b32 s38, s13, 7
    s_add_u32 s37, s37, s38               ; + cg*128
    v_lshlrev_b32 v3, 1, v2               ; lane*2
    """)
    for i in range(2):
        for r in range(4):
            off=(i+32*r)*514
            A(f"s_add_u32 s38, s37, {off}")
            A(f"buffer_load_ushort v{8+4*i+r}, v3, s[28:31], s38 offen")
            A(f"buffer_load_ushort v{24+4*i+r}, v3, s[32:35], s38 offen")
    A(f"""
    s_lshl_b32 s38, s13, 19               ; cg*64*8192
    s_lshl_b32 s48, s14, 7
    s_add_u32 s38, s38, s48
    s_lshl_b32 s48, s39, 4
    s_add_u32 s38, s38, s48
    s_add_u32 s38, s38, 0x{WT:x}
    v_lshlrev_b32 v4, 13, v2
    s_barrier
    s_waitcnt vmcnt(0)
    """)
    for r in range(8):
        A(f"v_lshl_or_b32 v{8+r}, v{24+r}, 16, v{8+r}")
    A(f"""
    buffer_store_dwordx4 v[8:11], v4, s[24:27], s38 offen
    buffer_store_dwordx4 v[12:15], v4, s[24:27], s38 offen offset:16
    """)
    bar2()
    A(f"s_branch {Lend}")
    A(f"{Lgate}:")
    srd(A,28,44,1024)
    A(f"""
    v_and_b32 v3, 7, v2                   ; seg
    v_lshlrev_b32 v4, 7, v3               ; seg*128
    """)
    for q in range(8):
        A(f"buffer_load_dwordx4 v[{32+4*q}:{35+4*q}], v4, s[28:31], 0 offen offset:{16*q}")
    A(f"""
    v_lshrrev_b32 v5, 3, v2
    s_lshl_b32 s13, s52, 3
    v_add_u32 v5, s13, v5                 ; row i
    v_and_b32 v6, 15, v5
    v_lshlrev_b32 v7, 3, v3               ; 8*seg
    v_xor_b32 v6, v6, v7
    v_lshlrev_b32 v7, 10, v5
    s_barrier
    """)
    for q in range(8):
        A(f"v_xor_b32 v8, {q}, v6")
        A(f"v_lshl_add_u32 v8, v8, 4, v7")
        A(f"ds_read_b128 v[{64+4*q}:{67+4*q}], v8")
    A("""
    v_mov_b32 v9, 0
    v_mov_b32 v10, 0
    s_waitcnt vmcnt(0) lgkmcnt(0)
    """)
    for q in range(32):
        A(f"v_dot2c_f32_bf16 v{9+(q&1)}, v{32+q}, v{64+q}")
    A(f"""
    s_nop 3
    v_add_f32 v9, v9, v10
    s_nop 1
    v_add_f32_dpp v9, v9, v9 quad_perm:[1,0,3,2] row_mask:0xf bank_mask:0xf
    s_nop 1
    v_add_f32_dpp v9, v9, v9 quad_perm:[2,3,0,1] row_mask:0xf bank_mask:0xf
    s_nop 1
    v_add_f32_dpp v9, v9, v9 row_half_mirror row_mask:0xf bank_mask:0xf
    v_mul_f32 v9, {f32hex(-LOG2E)}, v9
    v_exp_f32 v9, v9
    s_nop 0
    v_add_f32 v9, 1.0, v9
    v_rcp_f32 v9, v9
    v_lshlrev_b32 v8, 2, v5               ; row*4
    s_lshl_b32 s13, s50, 8
    s_add_u32 s13, s13, 0x{GATE:x}
    v_cmp_eq_u32 vcc, 0, v3
    s_and_saveexec_b64 s[14:15], vcc
    buffer_store_dword v9, v8, s[24:27], s13 offen
    s_branch {Lend}
    """)
    A(f"{Lkv}:")
    srd(A,28,8,16384)
    srd(A,32,10,16384)
    A(f"""
    s_sub_u32 s13, s12, 8                 ; kw
    s_lshl_b32 s14, s13, 13
    s_add_u32 s14, s14, 0x20000
    s_lshl_b32 s15, s13, 12
    v_lshlrev_b32 v3, 4, v2
    """)
    for j in range(4):
        A(f"""
        s_add_u32 m0, s14, {j*1024}
        s_add_u32 s36, s15, {j*1024}
        buffer_load_dwordx4 v3, s[28:31], s36 offen lds
        s_add_u32 m0, s14, {4096+j*1024}
        s_nop 0
        buffer_load_dwordx4 v3, s[32:35], s36 offen lds
        """)
    A("s_mov_b32 s32, s51")
    xaddr()
    A(f"""
    v_lshrrev_b32 v21, 4, v2
    v_and_b32 v23, 1, v21                 ; nh
    v_and_b32 v24, 15, v2
    v_lshrrev_b32 v25, 2, v24             ; r
    v_and_b32 v26, 3, v24                 ; c
    v_lshl_add_u32 v27, v17, 3, v25
    v_lshlrev_b32 v27, 5, v27
    v_lshl_add_u32 v27, v26, 3, v27
    v_lshl_add_u32 v27, v23, 12, v27
    v_add_u32 v22, s14, v27
    s_lshl_b32 s36, s13, 8
    """)
    for b in range(8):
        A(f"v_add_u32 v{8+b}, s36, v{8+b}")
    A("""
    s_waitcnt vmcnt(0)
    s_barrier
    """)
    for ks in range(8):
        a=48+8*(ks%4)
        if ks==4: pass
        A(f"ds_read_b64_tr_b16 v[{a}:{a+1}], v22 offset:{ks*512}")
        A(f"ds_read_b64_tr_b16 v[{a+2}:{a+3}], v22 offset:{ks*512+128}")
        A(f"ds_read_b128 v[{a+4}:{a+7}], v{8+ks}")
        if ks==3:
            for k2 in range(4):
                a2=48+8*k2
                A(f"s_waitcnt lgkmcnt({3*(3-k2)})")
                c="0" if k2==0 else f"v[{ACC}:{ACC+15}]"
                A(f"v_mfma_f32_32x32x16_bf16 v[{ACC}:{ACC+15}], v[{a2}:{a2+3}], v[{a2+4}:{a2+7}], {c}")
    for k2 in range(4):
        a2=48+8*k2
        A(f"s_waitcnt lgkmcnt({3*(3-k2)})")
        A(f"v_mfma_f32_32x32x16_bf16 v[{ACC}:{ACC+15}], v[{a2}:{a2+3}], v[{a2+4}:{a2+7}], v[{ACC}:{ACC+15}]")
    A(f"""
    v_lshl_add_u32 v3, v2, 4, s14
    s_nop 7
    s_nop 3
    """)
    for q in range(4):
        A(f"ds_write_b128 v3, v[{ACC+4*q}:{ACC+4*q+3}] offset:{q*1024}")
    Lv=A.label("kv_v")
    A(f"""
    s_waitcnt lgkmcnt(0)
    s_barrier
    s_cmp_ge_u32 s13, 2
    s_cbranch_scc1 {Lend}
    s_lshl_b32 s36, s13, 11
    s_add_u32 s36, s36, 0x20000
    v_lshl_add_u32 v3, v2, 4, s36
    """)
    for w in range(4):
        A(f"ds_read_b128 v[{48+8*w}:{51+8*w}], v3 offset:{w*8192}")
        A(f"ds_read_b128 v[{52+8*w}:{55+8*w}], v3 offset:{w*8192+1024}")
    A("s_waitcnt lgkmcnt(0)")
    for r in range(8):
        A(f"v_add_f32 v{48+r}, v{48+r}, v{56+r}")
        A(f"v_add_f32 v{64+r}, v{64+r}, v{72+r}")
    for r in range(8):
        A(f"v_add_f32 v{48+r}, v{48+r}, v{64+r}")
    for r in range(4):
        A(f"v_cvt_pk_bf16_f32 v{56+r}, v{48+2*r}, v{49+2*r}")
    A(f"""
    s_lshl_b32 s37, s50, 1
    s_add_u32 s37, s37, s51
    s_cmp_eq_u32 s13, 1
    s_cbranch_scc1 {Lv}
    v_lshlrev_b32 v4, 5, v16
    v_lshl_add_u32 v4, v17, 4, v4
    s_lshl_b32 s38, s37, 10
    s_add_u32 s38, s38, 0x{KF:x}
    buffer_store_dwordx4 v[56:59], v4, s[24:27], s38 offen
    v_mul_f32 v5, v48, v48
    """)
    for r in range(1,8):
        A(f"v_fmac_f32 v5, v{48+r}, v{48+r}")
    A(f"""
    v_mov_b32 v6, v5
    s_nop 1
    v_permlane32_swap_b32 v5, v6
    v_lshlrev_b32 v4, 2, v16
    v_add_f32 v5, v5, v6
    s_lshl_b32 s38, s37, 7
    s_add_u32 s38, s38, 0x{KN:x}
    buffer_store_dword v5, v4, s[24:27], s38 offen
    v_mov_b32 v6, v5
    s_nop 1
    v_max_f32_dpp v6, v6, v6 quad_perm:[1,0,3,2] row_mask:0xf bank_mask:0xf
    s_nop 1
    v_max_f32_dpp v6, v6, v6 quad_perm:[2,3,0,1] row_mask:0xf bank_mask:0xf
    s_nop 1
    v_max_f32_dpp v6, v6, v6 row_half_mirror row_mask:0xf bank_mask:0xf
    s_nop 1
    v_max_f32_dpp v6, v6, v6 row_mirror row_mask:0xf bank_mask:0xf
    s_nop 1
    v_readlane_b32 s14, v6, 0
    v_readlane_b32 s15, v6, 16
    v_mov_b32 v4, 0
    s_lshl_b32 s38, s37, 2
    s_add_u32 s38, s38, 0x{KNM:x}
    s_nop 1
    s_max_u32 s14, s14, s15
    v_mov_b32 v6, s14
    buffer_store_dword v6, v4, s[24:27], s38 offen
    s_branch {Lend}
    {Lv}:
    ; key n: u = n>>4 ; j = 4*((n>>3)&1) + (n&3) ; h2' = (n>>2)&1
    v_lshrrev_b32 v4, 4, v16
    v_mul_u32_u24 v4, 576, v4             ; u*576
    v_lshrrev_b32 v5, 2, v16
    v_and_b32 v5, 1, v5
    v_mul_u32_u24 v5, 288, v5
    v_add_u32 v4, v4, v5                  ; + h2'*288
    v_lshrrev_b32 v5, 3, v16
    v_and_b32 v5, 1, v5
    v_lshl_add_u32 v4, v5, 3, v4          ; + 4*jhi*2
    v_and_b32 v5, 3, v16
    v_lshl_add_u32 v4, v5, 1, v4          ; + (n&3)*2
    v_lshl_add_u32 v4, v17, 6, v4         ; + 4h2*16
    s_mul_i32 s38, s37, 1152
    s_add_u32 s38, s38, 0x{VF:x}
    v_mul_u32_u24 v5, 288, v5             ; (lane&3)*288
    v_mov_b32 v60, 0x3f803f80
    v_mov_b32 v61, 0x3f803f80
    v_mov_b32 v62, 0x3f803f80
    v_mov_b32 v63, 0x3f803f80
    v_mov_b32 v64, 0
    v_mov_b32 v65, 0
    v_mov_b32 v66, 0
    v_mov_b32 v67, 0
    """)
    for r in range(8):
        dh=8*(r>>2)+(r&3)
        op="buffer_store_short" if r%2==0 else "buffer_store_short_d16_hi"
        A(f"{op} v{56+r//2}, v4, s[24:27], s38 offen offset:{dh*16}")
    A("buffer_store_dwordx4 v[60:63], v5, s[24:27], s38 offen offset:256")
    A("buffer_store_dwordx4 v[64:67], v5, s[24:27], s38 offen offset:272")
    A(f"s_branch {Lend}")
    A(f"{Lwsp}:")
    srd(A,28,40,2048*514)
    srd(A,32,42,2048*514)
    A(f"""
    s_lshr_b32 s13, s50, 2                ; w'
    s_and_b32 s14, s50, 3                 ; l>>4
    s_and_b32 s15, s13, 1                 ; kh
    s_lshr_b32 s13, s13, 1                ; mq
    s_lshl_b32 s15, s15, 4
    s_lshl_b32 s13, s13, 4
    s_lshl_b32 s14, s14, 2
    s_add_u32 s13, s13, s14
    s_lshl_b32 s13, s13, 5
    s_add_u32 s13, s13, s15               ; f base
    v_lshrrev_b32 v3, 2, v2               ; l&15
    v_and_b32 v4, 3, v2                   ; r
    v_lshl_add_u32 v3, v4, 5, v3
    v_add_u32 v3, s13, v3                 ; f
    v_sub_u32 v4, 0x800, v3
    v_and_b32 v4, 0x7ff, v4               ; -f
    v_mul_u32_u24 v3, 514, v3
    v_mul_u32_u24 v4, 514, v4
    buffer_load_ushort v8, v3, s[28:31], 0 offen             ; wr[f,0]
    buffer_load_ushort v9, v3, s[32:35], 0 offen             ; wi[f,0]
    buffer_load_ushort v10, v4, s[28:31], 0 offen            ; wr[-f,0]
    buffer_load_ushort v11, v4, s[32:35], 0 offen            ; wi[-f,0]
    buffer_load_ushort v12, v3, s[28:31], 0 offen offset:512 ; wr[f,256]
    buffer_load_ushort v13, v3, s[32:35], 0 offen offset:512
    buffer_load_ushort v14, v4, s[28:31], 0 offen offset:512
    buffer_load_ushort v15, v4, s[32:35], 0 offen offset:512
    s_barrier
    s_waitcnt vmcnt(0)
    """)
    for r in range(8,16): A(f"v_lshlrev_b32 v{r}, 16, v{r}")
    A(f"""
    v_add_f32 v8, v8, v10                 ; 2Ur
    v_sub_f32 v9, v9, v11                 ; 2Ui
    v_add_f32 v12, v12, v14               ; 2Vr
    v_sub_f32 v13, v13, v15               ; 2Vi
    v_add_f32 v20, v8, v12
    v_add_f32 v21, v9, v13
    v_sub_f32 v22, v8, v12
    v_sub_f32 v23, v9, v13
    v_mul_f32 v20, 0x3e000000, v20
    v_mul_f32 v21, 0x3e000000, v21
    v_mul_f32 v22, 0x3e000000, v22
    v_mul_f32 v23, 0x3e000000, v23
    v_lshlrev_b32 v3, 4, v2
    s_lshl_b32 s13, s50, 10
    s_add_u32 s13, s13, 0x{WSP:x}
    buffer_store_dwordx4 v[20:23], v3, s[24:27], s13 offen
    s_branch {Lend}
    """)
    A(f"{Ltab}:")
    Ltw=A.label("tw"); L32=A.label("t32"); Lgo=A.label("tgo")
    A(f"""
    s_lshl_b32 s13, s50, 1
    s_add_u32 s13, s13, s12
    s_sub_u32 s13, s13, 8                 ; T
    v_lshrrev_b32 v3, 4, v2               ; g
    v_and_b32 v4, 15, v2                  ; m
    s_cmp_ge_u32 s13, 56
    s_cbranch_scc1 {Lend}
    s_cmp_ge_u32 s13, 40
    s_cbranch_scc1 {Ltw}
    s_cmp_ge_u32 s13, 32
    s_cbranch_scc1 {L32}
    s_lshr_b32 s14, s13, 3
    s_lshr_b32 s15, s13, 2
    s_and_b32 s15, s15, 1
    s_and_b32 s36, s13, 3
    s_mov_b32 s37, 0x3c800000             ; 1/64
    s_lshl_b32 s38, s13, 10
    s_add_u32 s38, s38, 0x{TF64:x}
    s_branch {Lgo}
    {L32}:
    s_sub_u32 s13, s13, 32
    s_lshr_b32 s14, s13, 2
    s_lshr_b32 s15, s13, 1
    s_and_b32 s15, s15, 1
    s_and_b32 s36, s13, 1
    s_mov_b32 s37, 0x3d000000             ; 1/32
    s_lshl_b32 s38, s13, 10
    s_add_u32 s38, s38, 0x{TF32:x}
    {Lgo}:
    s_lshl_b32 s14, s14, 4
    v_add_u32 v5, s14, v4                 ; rho
    s_lshl_b32 s36, s36, 4
    v_lshl_add_u32 v6, v3, 2, s36         ; nu0
    v_cvt_f32_u32 v5, v5
    v_mul_f32 v5, s37, v5                 ; rho/N
    v_cvt_f32_u32 v6, v6
    v_mul_f32 v7, v5, v6
    s_cmp_eq_u32 s15, 0
    s_cselect_b32 s39, 0, 0x3e800000
    s_cselect_b32 s48, 0xbe800000, 0
    """)
    for jj in range(4):
        A(f"""
        v_add_f32 v8, s39, v7
        v_add_f32 v9, s48, v7
        v_cos_f32 v{10+2*jj}, v8
        v_cos_f32 v{11+2*jj}, v9
        v_add_f32 v7, v7, v5
        """)
    for jj in range(4):
        A(f"v_cvt_pk_bf16_f32 v{20+jj}, v{10+2*jj}, v{11+2*jj}")
    A(f"""
    v_lshlrev_b32 v3, 4, v2
    buffer_store_dwordx4 v[20:23], v3, s[24:27], s38 offen
    s_barrier
    s_branch {Lend}
    {Ltw}:
    s_sub_u32 s13, s13, 40
    s_and_b32 s14, s13, 1
    s_lshl_b32 s14, s14, 4                ; 16kh
    s_lshr_b32 s15, s13, 1
    s_and_b32 s15, s15, 3
    s_lshl_b32 s15, s15, 4                ; 16q
    s_cmp_ge_u32 s13, 8
    s_cselect_b32 s36, s14, s15           ; a base
    s_cselect_b32 s37, s15, s14           ; b base
    s_cselect_b32 s39, 0x36000000, 1.0
    v_add_u32 v5, s36, v4
    v_lshl_add_u32 v6, v3, 2, s37
    v_cvt_f32_u32 v5, v5
    v_mul_f32 v5, 0x3a000000, v5          ; a/2048
    v_cvt_f32_u32 v6, v6
    v_mul_f32 v7, v5, v6
    """)
    for r in range(4):
        A(f"""
        v_cos_f32 v{20+r}, v7
        v_sin_f32 v{24+r}, v7
        v_add_f32 v7, v7, v5
        """)
    for r in range(8):
        A(f"v_mul_f32 v{20+r}, s39, v{20+r}")
    A(f"""
    v_lshlrev_b32 v3, 5, v2
    s_lshl_b32 s38, s13, 11
    s_add_u32 s38, s38, 0x{TW1:x}
    buffer_store_dwordx4 v[20:23], v3, s[24:27], s38 offen
    buffer_store_dwordx4 v[24:27], v3, s[24:27], s38 offen offset:16
    s_barrier
    """)
    A(f"{Lend}:")
    A("s_endpgm")
    return kernel_desc(name,96), f"; @launch kernel={name} grid=(256,1,1) block=(1024,1,1) lds=163840"
```

```python
QF   = 0x000000
KF   = 0x200000
VF   = 0x228000
GATE = 0x220000
KN   = 0x222000
KNM  = 0x224000
QN   = 0x240000
X1T  = 0x300000
WT   = 0x500000
WSP  = 0x700000
TF32 = 0x710000
TF64 = 0x712000
TW1  = 0x71A000
TW2  = 0x71E000
OO   = 0x800000
YT   = 0xA00000
WOT  = 0xC00000
WS_END = 0xD00000
QSCALE = 0.25*1.4426950408889634
```

```python
import sys,os
from asmlib import *
from layout import *
import k_proj
HDR=open("gated_mix__grouped_kv_mqa__spectral_gfnet__prompt.s.ref").read().split("; Override launch")[0]
def main(out):
    A=Asm()
    descs=[];launches=[]
    import importlib
    for mod,fn in KERNELS:
        m=importlib.import_module(mod)
        d,l=getattr(m,fn)(A,**({'prof':True} if (os.environ.get('PROF')==mod) else {}))
        descs.append(d); launches.append(l)
    s=HDR+"\n".join(launches)+"\n"
    s+='.amdgcn_target "amdgcn-amd-amdhsa--gfx950"\n.text\n'
    s+=A.text()
    s+='L_code_end:\n'
    s+='.section .rodata,"a"\n.p2align 6\n'
    s+=".p2align 6\n".join(descs)
    open(out,"w").write(s)
KERNELS=[("k_proj3","gen_proj"),("k_attn","gen_attn"),("k_out","gen_out")]
if __name__=="__main__":
    main(sys.argv[1] if len(sys.argv)>1 else "cur.s")
```

```python
class Asm:
    def __init__(self):
        self.lines=[]
        self.uid=0
    def __call__(self,s,*a):
        for l in s.strip("\n").split("\n"):
            l=l.strip()
            if l: self.lines.append("    "+l if not l.endswith(":") else l)
    def label(self,base):
        self.uid+=1
        return f"L_{base}_{self.uid}"
    def comment(self,s): self.lines.append("    ; "+s)
    def text(self): return "\n".join(self.lines)+"\n"

def vr(b,n=1):
    return f"v{b}" if n==1 else f"v[{b}:{b+n-1}]"
def sr(b,n=1):
    return f"s{b}" if n==1 else f"s[{b}:{b+n-1}]"

def kernel_begin(A,name):
    A.lines.append(f".globl {name}")
    A.lines.append(".p2align 8")
    A.lines.append(f".type {name},@function")
    A.lines.append(f"{name}:")

def kernel_desc(name,nvgpr,nsgpr=96):
    acc=(nvgpr+3)//4*4
    return f""".amdhsa_kernel {name}
  .amdhsa_next_free_vgpr {nvgpr}
  .amdhsa_next_free_sgpr {nsgpr}
  .amdhsa_accum_offset {acc}
  .amdhsa_group_segment_fixed_size 0
  .amdhsa_kernarg_size 96
  .amdhsa_user_sgpr_count 2
  .amdhsa_user_sgpr_kernarg_segment_ptr 1
  .amdhsa_system_sgpr_workgroup_id_x 1
.end_amdhsa_kernel
"""
def srd(A,d,base,nbytes,off=0):
    if off:
        A(f"s_add_u32 s{d}, s{base}, 0x{off:x}")
        A(f"s_addc_u32 s{d+1}, s{base+1}, 0")
    else:
        A(f"s_mov_b32 s{d}, s{base}")
        A(f"s_mov_b32 s{d+1}, s{base+1}")
    A(f"s_mov_b32 s{d+2}, 0x{nbytes:x}")
    A(f"s_mov_b32 s{d+3}, 0x00020000")
import struct
def f32hex(x):
    return "0x%08x"%struct.unpack("<I",struct.pack("<f",x))[0]

class Prof:
    def __init__(self,A,on,pv,ws,wave,lane,tmp=64,vt=1):
        self.A=A;self.on=on;self.pv=pv;self.ws=ws;self.wave=wave;self.lane=lane;self.tmp=tmp;self.vt=vt
    def ts(self,k):
        if not self.on: return
        self.A(f"""
        s_memtime s[98:99]
        s_waitcnt lgkmcnt(0)
        v_writelane_b32 v{self.pv}, s98, {k}
        """)
    def start(self):
        if not self.on: return
        self.A(f"v_mov_b32 v{self.pv}, 0")
        self.ts(0)
        self.A(f"""
        s_memrealtime s[98:99]
        s_waitcnt lgkmcnt(0)
        v_writelane_b32 v{self.pv}, s98, 32
        """)
    def end(self):
        if not self.on: return
        t=self.tmp
        self.A("s_mov_b64 exec, -1")
        self.ts(30)
        self.A("s_waitcnt vmcnt(0)")
        self.ts(31)
        self.A(f"""
        s_memrealtime s[98:99]
        s_waitcnt lgkmcnt(0)
        v_writelane_b32 v{self.pv}, s98, 33
        s_add_u32 s{t}, s{self.ws}, 0x1000000
        s_addc_u32 s{t+1}, s{self.ws+1}, 0
        s_mov_b32 s{t+2}, 0x100000
        s_mov_b32 s{t+3}, 0x00020000
        v_lshlrev_b32 v{self.vt}, 2, v{self.lane}
        s_lshl_b32 s3, s2, 4
        s_add_u32 s3, s3, s{self.wave}
        s_lshl_b32 s3, s3, 8
        buffer_store_dword v{self.pv}, v{self.vt}, s[{t}:{t+3}], s3 offen
        """)
```

```python
from asmlib import *
from layout import *

LOG2E=1.4426950408889634
def gen_proj(A, name="proj_kernel", prof=False):
    kernel_begin(A,name)
    Lend=A.label("end")
    Lexit=A.label("exit")
    Lside=A.label("side")
    P=Prof(A,prof,95,46,12,2)
    A(f"""
    s_cmp_ge_u32 s2, 256
    s_cbranch_scc1 {Lexit}
    """)
    P.start()
    A(f"""
    s_load_dwordx8 s[4:11], s[0:1], 0
    s_load_dwordx4 s[40:43], s[0:1], 48   ; w_r, w_i
    s_load_dwordx2 s[44:45], s[0:1], 64   ; gate_w
    s_load_dwordx2 s[46:47], s[0:1], 88   ; ws
    s_load_dwordx2 s[54:55], s[0:1], 32   ; wo
    v_lshrrev_b32 v1, 6, v0
    v_and_b32 v2, 63, v0                  ; lane
    s_and_b32 s50, s2, 31                 ; rb
    s_lshr_b32 s51, s2, 5                 ; cb
    v_readfirstlane_b32 s12, v1           ; wave
    v_and_b32 v16, 31, v2                 ; n
    v_lshrrev_b32 v17, 5, v2              ; h2
    s_waitcnt lgkmcnt(0)
    """)
    P.ts(1)
    srd(A,16,4,2048*1024)
    srd(A,20,6,512*1024)
    srd(A,24,46,WS_END)
    A(f"""
    s_cmp_ge_u32 s12, 8
    s_cbranch_scc1 {Lside}
    """)
    A(f"""
    s_and_b32 s13, s12, 1
    s_lshl_b32 s13, s13, 3                ; 8*(w&1)
    v_xor_b32 v3, s13, v2                 ; lane ^ 8(w&1)
    s_lshl_b32 s14, s12, 3                ; i0 = 8w
    """)
    for j in range(8):
        A(f"""
        s_add_u32 s15, s14, {j}
        s_and_b32 s28, s15, 31
        s_lshl_b32 s28, s28, 16           ; n1*64*1024
        s_lshr_b32 s29, s15, 5
        s_lshl_b32 s30, s50, 1
        s_add_u32 s29, s29, s30
        s_lshl_b32 s29, s29, 10
        s_add_u32 s28, s28, s29
        s_lshl_b32 m0, s15, 10
        v_xor_b32 v4, {j}, v3
        v_lshlrev_b32 v4, 4, v4
        buffer_load_dwordx4 v4, s[16:19], s28 offen lds
        """)
    A(f"""
    v_lshrrev_b32 v5, 3, v2               ; L>>3
    v_lshlrev_b32 v5, 10, v5
    v_and_b32 v6, 7, v2
    v_lshrrev_b32 v7, 4, v2
    v_and_b32 v7, 1, v7
    v_lshlrev_b32 v7, 2, v7
    v_xor_b32 v6, v6, v7
    v_lshl_add_u32 v5, v6, 4, v5          ; voffset
    s_lshl_b32 s28, s12, 16               ; blk0*8192 = 8w*8192
    s_lshl_b32 s29, s51, 7
    s_add_u32 s28, s28, s29
    s_lshl_b32 s30, s12, 13               ; blk0*1024
    s_add_u32 s30, s30, 0x10000
    """)
    for j in range(8):
        A(f"""
        s_add_u32 m0, s30, {j*1024}
        s_add_u32 s31, s28, {j*8192}
        buffer_load_dwordx4 v5, s[20:23], s31 offen lds
        """)
    A(f"""
    s_lshr_b32 s32, s12, 1
    s_and_b32 s32, s32, 1                 ; nt
    s_and_b32 s33, s12, 1                 ; mt
    """)
    def xaddr():
        A(f"""
        s_lshl_b32 s34, s32, 5
        v_add_u32 v18, s34, v16               ; row i
        v_and_b32 v19, 15, v18
        v_xor_b32 v19, v19, v17               ; (row&15)^h2
        v_lshlrev_b32 v20, 10, v18            ; row*1024
        """)
        for b in range(8):
            A(f"""
            v_xor_b32 v21, {2*b}, v19
            v_lshl_add_u32 v{8+b}, v21, 4, v20
            """)
    P.ts(2)
    xaddr()
    Lfft=A.label("fft")
    A(f"""
    s_cmp_ge_u32 s12, 4
    s_cbranch_scc1 {Lfft}
    """)
    BAR2=12
    def bar2():
        L=A.label("nob2")
        A(f"s_cmp_ge_u32 s51, 2")
        A(f"s_cbranch_scc1 {L}")
        A("s_barrier")
        A(f"{L}:")
    A(f"""
    v_lshrrev_b32 v21, 4, v2              ; G
    v_and_b32 v23, 1, v21                 ; nh
    v_and_b32 v24, 15, v2                 ; i
    v_lshrrev_b32 v25, 2, v24             ; r
    v_and_b32 v26, 3, v24                 ; c
    v_lshl_add_u32 v27, v17, 3, v25       ; 8*h2 + r
    v_lshlrev_b32 v27, 7, v27             ; *128
    v_lshlrev_b32 v28, 5, v23             ; nh*32
    v_lshl_add_u32 v28, v26, 3, v28       ; + c*8
    s_lshl_b32 s34, s33, 6
    v_add_u32 v28, s34, v28               ; + mt*64
    v_lshrrev_b32 v29, 1, v25
    v_lshlrev_b32 v29, 6, v29
    v_xor_b32 v28, v28, v29
    v_add_u32 v22, v27, v28
    v_add_u32 v22, 0x10000, v22
    """)
    P.ts(3)
    A("s_waitcnt vmcnt(0)")
    P.ts(4)
    A("s_barrier")
    P.ts(5)
    ACC=32; DEPTH=4; AB=48
    def issue(ks):
        sl=ks%DEPTH; a=AB+8*sl; b=a+4
        A(f"ds_read_b64_tr_b16 v[{a}:{a+1}], v22 offset:{ks*2048}")
        A(f"ds_read_b64_tr_b16 v[{a+2}:{a+3}], v22 offset:{ks*2048+512}")
        A(f"ds_read_b128 v[{b}:{b+3}], v{8+(ks&7)} offset:{(ks>>3)*256}")
    for ks in range(DEPTH): issue(ks)
    for ks in range(32):
        sl=ks%DEPTH; a=AB+8*sl; b=a+4
        rem=min(DEPTH-1,31-ks)
        A(f"s_waitcnt lgkmcnt({3*rem})")
        c="0" if ks==0 else f"v[{ACC}:{ACC+15}]"
        A(f"v_mfma_f32_32x32x16_bf16 v[{ACC}:{ACC+15}], v[{a}:{a+3}], v[{b}:{b+3}], {c}")
        if ks+DEPTH<32: issue(ks+DEPTH)
        if ks==BAR2: bar2()
    P.ts(6)
    A(f"""
    s_mov_b32 s34, {f32hex(QSCALE)}
    s_lshl_b32 s35, s50, 16
    s_lshl_b32 s36, s51, 7                ; 4cb*32
    s_add_u32 s35, s35, s36
    s_lshl_b32 s36, s33, 6                ; 2mt*32
    s_add_u32 s35, s35, s36
    v_lshl_add_u32 v21, v17, 4, v20       ; row*1024 + h2*16
    s_nop 7
    s_nop 3
    """)
    for r in range(16):
        A(f"v_mul_f32 v{ACC+r}, s34, v{ACC+r}")
    A(f"v_mul_f32 v23, v{ACC}, v{ACC}")
    A(f"v_mul_f32 v24, v{ACC+8}, v{ACC+8}")
    for r in range(1,8):
        A(f"v_fmac_f32 v23, v{ACC+r}, v{ACC+r}")
        A(f"v_fmac_f32 v24, v{ACC+8+r}, v{ACC+8+r}")
    for r in range(8):
        A(f"v_cvt_pk_bf16_f32 v{AB+r}, v{ACC+2*r}, v{ACC+2*r+1}")
    A(f"""
    buffer_store_dwordx4 v[{AB}:{AB+3}], v21, s[24:27], s35 offen
    buffer_store_dwordx4 v[{AB+4}:{AB+7}], v21, s[24:27], s35 offen offset:32
    v_permlane32_swap_b32 v23, v24
    v_lshlrev_b32 v25, 7, v18             ; row*128
    v_lshl_add_u32 v25, v17, 2, v25
    v_add_f32 v23, v23, v24
    s_lshr_b32 s36, s35, 3
    s_add_u32 s36, s36, 0x{QN:x}
    buffer_store_dword v23, v25, s[24:27], s36 offen
    s_branch {Lend}
    """)
    A(f"{Lfft}:")
    FP=48; FC=56; FR=64
    A(f"""
    v_lshrrev_b32 v21, 3, v16
    v_and_b32 v21, 1, v21                 ; part
    v_and_b32 v22, 7, v16
    v_lshrrev_b32 v23, 4, v16
    v_lshl_add_u32 v22, v23, 3, v22       ; kc
    s_lshl_b32 s34, s51, 5
    s_lshl_b32 s35, s33, 4
    s_add_u32 s34, s34, s35
    v_add_u32 v22, s34, v22               ; c
    v_cvt_f32_u32 v24, v21
    v_mul_f32 v24, 0x3e800000, v24        ; phi
    v_lshl_add_u32 v25, v22, 1, v21       ; 2c+part
    v_cmp_eq_u32 vcc, 1, v25
    v_mov_b32 v26, 0x100
    s_nop 0
    v_cndmask_b32 v22, v22, v26, vcc
    v_cndmask_b32_e64 v24, v24, 0, vcc
    v_cvt_f32_u32 v26, v22                ; k
    v_mul_f32 v26, 0x3b000000, v26        ; k/512
    v_lshlrev_b32 v27, 3, v17
    v_cvt_f32_u32 v27, v27                ; 8*h2
    v_fma_f32 v28, v26, v27, v24
    v_mul_f32 v29, 0x41800000, v26        ; k/32
    v_cos_f32 v30, v29
    s_nop 0
    v_add_f32 v30, v30, v30               ; K2
    """)
    for j in range(8):
        A(f"v_add_f32 v31, v28, v29")
        A(f"v_cos_f32 v{FP+j}, v28")
        A(f"v_cos_f32 v{FC+j}, v31")
        if j<7: A(f"v_add_f32 v28, v28, v26")
    A("s_nop 0")
    for j in range(4):
        A(f"v_cvt_pk_bf16_f32 v{FR+j}, v{FP+2*j}, v{FP+2*j+1}")
    for j in range(4):
        A(f"v_cvt_pk_bf16_f32 v{FR+4+j}, v{FC+2*j}, v{FC+2*j+1}")
    P.ts(3)
    A("s_waitcnt vmcnt(0)")
    P.ts(4)
    A("s_barrier")
    P.ts(5)
    BB=72
    def issueB(ks,base=BB):
        b=base+4*(ks%DEPTH)
        A(f"ds_read_b128 v[{b}:{b+3}], v{8+(ks&7)} offset:{(ks>>3)*256}")
    for ks in range(DEPTH): issueB(ks)
    prev,cur=FP,FC
    for ks in range(32):
        b=BB+4*(ks%DEPTH); a=FR+4*(ks&1)
        rem=min(DEPTH-1,31-ks)
        A(f"s_waitcnt lgkmcnt({rem})")
        c="0" if ks==0 else f"v[{ACC}:{ACC+15}]"
        A(f"v_mfma_f32_32x32x16_bf16 v[{ACC}:{ACC+15}], v[{a}:{a+3}], v[{b}:{b+3}], {c}")
        if ks+DEPTH<32: issueB(ks+DEPTH)
        if ks+2<32:
            for j in range(8):
                A(f"v_fma_f32 v{prev+j}, v30, v{cur+j}, -v{prev+j}")
            for j in range(4):
                A(f"v_cvt_pk_bf16_f32 v{a+j}, v{prev+2*j}, v{prev+2*j+1}")
            prev,cur=cur,prev
        if ks==BAR2: bar2()
    P.ts(6)
    A(f"""
    s_lshl_b32 s35, s34, 13               ; c0*8192
    s_lshl_b32 s36, s50, 8                ; 64rb*4
    s_add_u32 s35, s35, s36
    s_add_u32 s35, s35, 0x{X1T:x}
    v_lshlrev_b32 v21, 2, v18             ; row*4
    v_lshl_add_u32 v21, v17, 15, v21      ; + h2*4*8192
    s_nop 7
    s_nop 3
    """)
    idx=0
    for g in range(2):
        for r in range(4):
            A(f"v_cvt_pk_bf16_f32 v{FP+idx}, v{ACC+8*g+r}, v{ACC+8*g+4+r}")
            idx+=1
    idx=0
    for g in range(2):
        for r in range(4):
            kc=8*g+r
            A(f"s_add_u32 s36, s35, {kc*8192}")
            A(f"buffer_store_dword v{FP+idx}, v21, s[24:27], s36 offen")
            idx+=1
    A(f"s_branch {Lend}")
    A(f"{Lside}:")
    Lw=A.label("wtr"); Lgate=A.label("gate"); Lkv=A.label("kv"); Lwsp=A.label("wsp"); Ltab=A.label("tab"); Lwot=A.label("wot")
    A(f"""
    s_cmp_ge_u32 s12, 12
    s_cbranch_scc1 {Lw}
    s_cmp_lt_u32 s51, 2
    s_cbranch_scc1 {Lkv}
    s_mov_b32 s52, s51
    s_cmp_eq_u32 s12, 11
    s_cbranch_scc1 {Lgate}
    s_cmp_ge_u32 s51, 4
    s_cbranch_scc1 {Lwot}
    s_sub_u32 s52, s51, 2
    s_cmp_eq_u32 s12, 10
    s_cbranch_scc1 {Lgate}
    s_cmp_eq_u32 s51, 3
    s_cbranch_scc1 {Ltab}
    s_cmp_eq_u32 s12, 8
    s_cbranch_scc1 {Lwsp}
    s_branch {Lend}
    """)
    A(f"""
    {Lwot}:
    s_cmp_ge_u32 s12, 10
    s_cbranch_scc1 {Lend}
    """)
    srd(A,28,54,512*1024)
    A(f"""
    s_sub_u32 s13, s2, 128
    s_lshl_b32 s13, s13, 1
    s_add_u32 s13, s13, s12
    s_sub_u32 s13, s13, 8
    s_lshl_b32 s13, s13, 1                ; F0
    s_lshr_b32 s14, s13, 5                ; nb
    s_and_b32 s15, s13, 31                ; ks0
    s_lshl_b32 s15, s15, 14
    s_lshl_b32 s14, s14, 6
    s_add_u32 s15, s15, s14
    v_lshlrev_b32 v3, 1, v16
    v_lshl_add_u32 v3, v17, 12, v3        ; 4h2*1024 + n*2
    """)
    for f in range(2):
        for jh in range(2):
            A(f"s_add_u32 s14, s15, {f*16384+jh*8192}")
            for jl in range(4):
                A(f"buffer_load_ushort v{20+8*f+4*jh+jl}, v3, s[28:31], s14 offen offset:{1024*jl}")
    A(f"""
    v_lshlrev_b32 v4, 4, v2
    s_lshl_b32 s13, s13, 10
    s_add_u32 s13, s13, 0x{WOT:x}
    s_barrier
    s_waitcnt vmcnt(0)
    """)
    for r in range(8):
        A(f"v_lshl_or_b32 v{40+r}, v{21+2*r}, 16, v{20+2*r}")
    A(f"""
    buffer_store_dwordx4 v[40:43], v4, s[24:27], s13 offen
    buffer_store_dwordx4 v[44:47], v4, s[24:27], s13 offen offset:1024
    s_branch {Lend}
    """)
    A(f"{Lw}:")
    srd(A,28,40,2048*514)
    srd(A,32,42,2048*514)
    A(f"""
    s_and_b32 s13, s2, 3                  ; cg
    s_lshr_b32 s14, s2, 2                 ; pb
    s_lshr_b32 s15, s14, 3                ; w'
    s_and_b32 s36, s14, 7                 ; q8
    s_and_b32 s37, s15, 1                 ; kh
    s_lshr_b32 s38, s15, 1                ; mq
    s_lshl_b32 s37, s37, 4
    s_and_b32 s39, s36, 1
    s_lshl_b32 s39, s39, 3
    s_add_u32 s37, s37, s39               ; 16kh+8(q8&1)
    s_sub_u32 s39, s12, 12
    s_lshl_b32 s39, s39, 1                ; i0
    s_add_u32 s37, s37, s39               ; k1 for i0
    s_lshl_b32 s38, s38, 4
    s_lshr_b32 s48, s36, 1
    s_lshl_b32 s48, s48, 2
    s_add_u32 s38, s38, s48               ; k2 for r=0
    s_lshl_b32 s38, s38, 5
    s_add_u32 s37, s37, s38               ; f0
    s_mul_i32 s37, s37, 514
    s_lshl_b32 s38, s13, 7
    s_add_u32 s37, s37, s38               ; + cg*128
    v_lshlrev_b32 v3, 1, v2               ; lane*2
    """)
    for i in range(2):
        for r in range(4):
            off=(i+32*r)*514
            A(f"s_add_u32 s38, s37, {off}")
            A(f"buffer_load_ushort v{8+4*i+r}, v3, s[28:31], s38 offen")
            A(f"buffer_load_ushort v{24+4*i+r}, v3, s[32:35], s38 offen")
    A(f"""
    s_lshl_b32 s38, s13, 19               ; cg*64*8192
    s_lshl_b32 s48, s14, 7
    s_add_u32 s38, s38, s48
    s_lshl_b32 s48, s39, 4
    s_add_u32 s38, s38, s48
    s_add_u32 s38, s38, 0x{WT:x}
    v_lshlrev_b32 v4, 13, v2
    s_barrier
    s_waitcnt vmcnt(0)
    """)
    for r in range(8):
        A(f"v_lshl_or_b32 v{8+r}, v{24+r}, 16, v{8+r}")
    A(f"""
    buffer_store_dwordx4 v[8:11], v4, s[24:27], s38 offen
    buffer_store_dwordx4 v[12:15], v4, s[24:27], s38 offen offset:16
    """)
    bar2()
    A(f"s_branch {Lend}")
    A(f"{Lgate}:")
    srd(A,28,44,1024)
    A(f"""
    v_and_b32 v3, 7, v2                   ; seg
    v_lshlrev_b32 v4, 7, v3               ; seg*128
    """)
    for q in range(8):
        A(f"buffer_load_dwordx4 v[{32+4*q}:{35+4*q}], v4, s[28:31], 0 offen offset:{16*q}")
    A(f"""
    v_lshrrev_b32 v5, 3, v2
    s_lshl_b32 s13, s52, 3
    v_add_u32 v5, s13, v5                 ; row i
    v_and_b32 v6, 15, v5
    v_lshlrev_b32 v7, 3, v3               ; 8*seg
    v_xor_b32 v6, v6, v7
    v_lshlrev_b32 v7, 10, v5
    s_barrier
    """)
    for q in range(8):
        A(f"v_xor_b32 v8, {q}, v6")
        A(f"v_lshl_add_u32 v8, v8, 4, v7")
        A(f"ds_read_b128 v[{64+4*q}:{67+4*q}], v8")
    A("""
    v_mov_b32 v9, 0
    v_mov_b32 v10, 0
    s_waitcnt vmcnt(0) lgkmcnt(0)
    """)
    for q in range(32):
        A(f"v_dot2c_f32_bf16 v{9+(q&1)}, v{32+q}, v{64+q}")
    A(f"""
    s_nop 3
    v_add_f32 v9, v9, v10
    s_nop 1
    v_add_f32_dpp v9, v9, v9 quad_perm:[1,0,3,2] row_mask:0xf bank_mask:0xf
    s_nop 1
    v_add_f32_dpp v9, v9, v9 quad_perm:[2,3,0,1] row_mask:0xf bank_mask:0xf
    s_nop 1
    v_add_f32_dpp v9, v9, v9 row_half_mirror row_mask:0xf bank_mask:0xf
    v_mul_f32 v9, {f32hex(-LOG2E)}, v9
    v_exp_f32 v9, v9
    s_nop 0
    v_add_f32 v9, 1.0, v9
    v_rcp_f32 v9, v9
    v_lshlrev_b32 v8, 2, v5               ; row*4
    s_lshl_b32 s13, s50, 8
    s_add_u32 s13, s13, 0x{GATE:x}
    v_cmp_eq_u32 vcc, 0, v3
    s_and_saveexec_b64 s[14:15], vcc
    buffer_store_dword v9, v8, s[24:27], s13 offen
    s_branch {Lend}
    """)
    A(f"{Lkv}:")
    srd(A,28,8,16384)
    srd(A,32,10,16384)
    A(f"""
    s_sub_u32 s13, s12, 8                 ; kw
    s_lshl_b32 s14, s13, 13
    s_add_u32 s14, s14, 0x20000
    s_lshl_b32 s15, s13, 12
    v_lshlrev_b32 v3, 4, v2
    """)
    for j in range(4):
        A(f"""
        s_add_u32 m0, s14, {j*1024}
        s_add_u32 s36, s15, {j*1024}
        buffer_load_dwordx4 v3, s[28:31], s36 offen lds
        s_add_u32 m0, s14, {4096+j*1024}
        s_nop 0
        buffer_load_dwordx4 v3, s[32:35], s36 offen lds
        """)
    A("s_mov_b32 s32, s51")
    xaddr()
    A(f"""
    v_lshrrev_b32 v21, 4, v2
    v_and_b32 v23, 1, v21                 ; nh
    v_and_b32 v24, 15, v2
    v_lshrrev_b32 v25, 2, v24             ; r
    v_and_b32 v26, 3, v24                 ; c
    v_lshl_add_u32 v27, v17, 3, v25
    v_lshlrev_b32 v27, 5, v27
    v_lshl_add_u32 v27, v26, 3, v27
    v_lshl_add_u32 v27, v23, 12, v27
    v_add_u32 v22, s14, v27
    s_lshl_b32 s36, s13, 8
    """)
    for b in range(8):
        A(f"v_add_u32 v{8+b}, s36, v{8+b}")
    A("""
    s_waitcnt vmcnt(0)
    s_barrier
    """)
    for ks in range(8):
        a=48+8*(ks%4)
        if ks==4: pass
        A(f"ds_read_b64_tr_b16 v[{a}:{a+1}], v22 offset:{ks*512}")
        A(f"ds_read_b64_tr_b16 v[{a+2}:{a+3}], v22 offset:{ks*512+128}")
        A(f"ds_read_b128 v[{a+4}:{a+7}], v{8+ks}")
        if ks==3:
            for k2 in range(4):
                a2=48+8*k2
                A(f"s_waitcnt lgkmcnt({3*(3-k2)})")
                c="0" if k2==0 else f"v[{ACC}:{ACC+15}]"
                A(f"v_mfma_f32_32x32x16_bf16 v[{ACC}:{ACC+15}], v[{a2}:{a2+3}], v[{a2+4}:{a2+7}], {c}")
    for k2 in range(4):
        a2=48+8*k2
        A(f"s_waitcnt lgkmcnt({3*(3-k2)})")
        A(f"v_mfma_f32_32x32x16_bf16 v[{ACC}:{ACC+15}], v[{a2}:{a2+3}], v[{a2+4}:{a2+7}], v[{ACC}:{ACC+15}]")
    A(f"""
    v_lshl_add_u32 v3, v2, 4, s14
    s_nop 7
    s_nop 3
    """)
    for q in range(4):
        A(f"ds_write_b128 v3, v[{ACC+4*q}:{ACC+4*q+3}] offset:{q*1024}")
    Lv=A.label("kv_v")
    A(f"""
    s_waitcnt lgkmcnt(0)
    s_barrier
    s_cmp_ge_u32 s13, 2
    s_cbranch_scc1 {Lend}
    s_lshl_b32 s36, s13, 11
    s_add_u32 s36, s36, 0x20000
    v_lshl_add_u32 v3, v2, 4, s36
    """)
    for w in range(4):
        A(f"ds_read_b128 v[{48+8*w}:{51+8*w}], v3 offset:{w*8192}")
        A(f"ds_read_b128 v[{52+8*w}:{55+8*w}], v3 offset:{w*8192+1024}")
    A("s_waitcnt lgkmcnt(0)")
    for r in range(8):
        A(f"v_add_f32 v{48+r}, v{48+r}, v{56+r}")
        A(f"v_add_f32 v{64+r}, v{64+r}, v{72+r}")
    for r in range(8):
        A(f"v_add_f32 v{48+r}, v{48+r}, v{64+r}")
    for r in range(4):
        A(f"v_cvt_pk_bf16_f32 v{56+r}, v{48+2*r}, v{49+2*r}")
    A(f"""
    s_lshl_b32 s37, s50, 1
    s_add_u32 s37, s37, s51
    s_cmp_eq_u32 s13, 1
    s_cbranch_scc1 {Lv}
    v_lshlrev_b32 v4, 5, v16
    v_lshl_add_u32 v4, v17, 4, v4
    s_lshl_b32 s38, s37, 10
    s_add_u32 s38, s38, 0x{KF:x}
    buffer_store_dwordx4 v[56:59], v4, s[24:27], s38 offen
    v_mul_f32 v5, v48, v48
    """)
    for r in range(1,8):
        A(f"v_fmac_f32 v5, v{48+r}, v{48+r}")
    A(f"""
    v_mov_b32 v6, v5
    s_nop 1
    v_permlane32_swap_b32 v5, v6
    v_lshlrev_b32 v4, 2, v16
    v_add_f32 v5, v5, v6
    s_lshl_b32 s38, s37, 7
    s_add_u32 s38, s38, 0x{KN:x}
    buffer_store_dword v5, v4, s[24:27], s38 offen
    v_mov_b32 v6, v5
    s_nop 1
    v_max_f32_dpp v6, v6, v6 quad_perm:[1,0,3,2] row_mask:0xf bank_mask:0xf
    s_nop 1
    v_max_f32_dpp v6, v6, v6 quad_perm:[2,3,0,1] row_mask:0xf bank_mask:0xf
    s_nop 1
    v_max_f32_dpp v6, v6, v6 row_half_mirror row_mask:0xf bank_mask:0xf
    s_nop 1
    v_max_f32_dpp v6, v6, v6 row_mirror row_mask:0xf bank_mask:0xf
    s_nop 1
    v_readlane_b32 s14, v6, 0
    v_readlane_b32 s15, v6, 16
    v_mov_b32 v4, 0
    s_lshl_b32 s38, s37, 2
    s_add_u32 s38, s38, 0x{KNM:x}
    s_nop 1
    s_max_u32 s14, s14, s15
    v_mov_b32 v6, s14
    buffer_store_dword v6, v4, s[24:27], s38 offen
    s_branch {Lend}
    {Lv}:
    ; key n: u = n>>4 ; j = 4*((n>>3)&1) + (n&3) ; h2' = (n>>2)&1
    v_lshrrev_b32 v4, 4, v16
    v_mul_u32_u24 v4, 576, v4             ; u*576
    v_lshrrev_b32 v5, 2, v16
    v_and_b32 v5, 1, v5
    v_mul_u32_u24 v5, 288, v5
    v_add_u32 v4, v4, v5                  ; + h2'*288
    v_lshrrev_b32 v5, 3, v16
    v_and_b32 v5, 1, v5
    v_lshl_add_u32 v4, v5, 3, v4          ; + 4*jhi*2
    v_and_b32 v5, 3, v16
    v_lshl_add_u32 v4, v5, 1, v4          ; + (n&3)*2
    v_lshl_add_u32 v4, v17, 6, v4         ; + 4h2*16
    s_mul_i32 s38, s37, 1152
    s_add_u32 s38, s38, 0x{VF:x}
    v_mul_u32_u24 v5, 288, v5             ; (lane&3)*288
    v_mov_b32 v60, 0x3f803f80
    v_mov_b32 v61, 0x3f803f80
    v_mov_b32 v62, 0x3f803f80
    v_mov_b32 v63, 0x3f803f80
    v_mov_b32 v64, 0
    v_mov_b32 v65, 0
    v_mov_b32 v66, 0
    v_mov_b32 v67, 0
    """)
    for r in range(8):
        dh=8*(r>>2)+(r&3)
        op="buffer_store_short" if r%2==0 else "buffer_store_short_d16_hi"
        A(f"{op} v{56+r//2}, v4, s[24:27], s38 offen offset:{dh*16}")
    A("buffer_store_dwordx4 v[60:63], v5, s[24:27], s38 offen offset:256")
    A("buffer_store_dwordx4 v[64:67], v5, s[24:27], s38 offen offset:272")
    A(f"s_branch {Lend}")
    A(f"{Lwsp}:")
    srd(A,28,40,2048*514)
    srd(A,32,42,2048*514)
    A(f"""
    s_lshr_b32 s13, s50, 2                ; w'
    s_and_b32 s14, s50, 3                 ; l>>4
    s_and_b32 s15, s13, 1                 ; kh
    s_lshr_b32 s13, s13, 1                ; mq
    s_lshl_b32 s15, s15, 4
    s_lshl_b32 s13, s13, 4
    s_lshl_b32 s14, s14, 2
    s_add_u32 s13, s13, s14
    s_lshl_b32 s13, s13, 5
    s_add_u32 s13, s13, s15               ; f base
    v_lshrrev_b32 v3, 2, v2               ; l&15
    v_and_b32 v4, 3, v2                   ; r
    v_lshl_add_u32 v3, v4, 5, v3
    v_add_u32 v3, s13, v3                 ; f
    v_sub_u32 v4, 0x800, v3
    v_and_b32 v4, 0x7ff, v4               ; -f
    v_mul_u32_u24 v3, 514, v3
    v_mul_u32_u24 v4, 514, v4
    buffer_load_ushort v8, v3, s[28:31], 0 offen             ; wr[f,0]
    buffer_load_ushort v9, v3, s[32:35], 0 offen             ; wi[f,0]
    buffer_load_ushort v10, v4, s[28:31], 0 offen            ; wr[-f,0]
    buffer_load_ushort v11, v4, s[32:35], 0 offen            ; wi[-f,0]
    buffer_load_ushort v12, v3, s[28:31], 0 offen offset:512 ; wr[f,256]
    buffer_load_ushort v13, v3, s[32:35], 0 offen offset:512
    buffer_load_ushort v14, v4, s[28:31], 0 offen offset:512
    buffer_load_ushort v15, v4, s[32:35], 0 offen offset:512
    s_barrier
    s_waitcnt vmcnt(0)
    """)
    for r in range(8,16): A(f"v_lshlrev_b32 v{r}, 16, v{r}")
    A(f"""
    v_add_f32 v8, v8, v10                 ; 2Ur
    v_sub_f32 v9, v9, v11                 ; 2Ui
    v_add_f32 v12, v12, v14               ; 2Vr
    v_sub_f32 v13, v13, v15               ; 2Vi
    v_add_f32 v20, v8, v12
    v_add_f32 v21, v9, v13
    v_sub_f32 v22, v8, v12
    v_sub_f32 v23, v9, v13
    v_mul_f32 v20, 0x3e000000, v20
    v_mul_f32 v21, 0x3e000000, v21
    v_mul_f32 v22, 0x3e000000, v22
    v_mul_f32 v23, 0x3e000000, v23
    v_lshlrev_b32 v3, 4, v2
    s_lshl_b32 s13, s50, 10
    s_add_u32 s13, s13, 0x{WSP:x}
    buffer_store_dwordx4 v[20:23], v3, s[24:27], s13 offen
    s_branch {Lend}
    """)
    A(f"{Ltab}:")
    Ltw=A.label("tw"); L32=A.label("t32"); Lgo=A.label("tgo")
    A(f"""
    s_lshl_b32 s13, s50, 1
    s_add_u32 s13, s13, s12
    s_sub_u32 s13, s13, 8                 ; T
    v_lshrrev_b32 v3, 4, v2               ; g
    v_and_b32 v4, 15, v2                  ; m
    s_cmp_ge_u32 s13, 56
    s_cbranch_scc1 {Lend}
    s_cmp_ge_u32 s13, 40
    s_cbranch_scc1 {Ltw}
    s_cmp_ge_u32 s13, 32
    s_cbranch_scc1 {L32}
    s_lshr_b32 s14, s13, 3
    s_lshr_b32 s15, s13, 2
    s_and_b32 s15, s15, 1
    s_and_b32 s36, s13, 3
    s_mov_b32 s37, 0x3c800000             ; 1/64
    s_lshl_b32 s38, s13, 10
    s_add_u32 s38, s38, 0x{TF64:x}
    s_branch {Lgo}
    {L32}:
    s_sub_u32 s13, s13, 32
    s_lshr_b32 s14, s13, 2
    s_lshr_b32 s15, s13, 1
    s_and_b32 s15, s15, 1
    s_and_b32 s36, s13, 1
    s_mov_b32 s37, 0x3d000000             ; 1/32
    s_lshl_b32 s38, s13, 10
    s_add_u32 s38, s38, 0x{TF32:x}
    {Lgo}:
    s_lshl_b32 s14, s14, 4
    v_add_u32 v5, s14, v4                 ; rho
    s_lshl_b32 s36, s36, 4
    v_lshl_add_u32 v6, v3, 2, s36         ; nu0
    v_cvt_f32_u32 v5, v5
    v_mul_f32 v5, s37, v5                 ; rho/N
    v_cvt_f32_u32 v6, v6
    v_mul_f32 v7, v5, v6
    s_cmp_eq_u32 s15, 0
    s_cselect_b32 s39, 0, 0x3e800000
    s_cselect_b32 s48, 0xbe800000, 0
    """)
    for jj in range(4):
        A(f"""
        v_add_f32 v8, s39, v7
        v_add_f32 v9, s48, v7
        v_cos_f32 v{10+2*jj}, v8
        v_cos_f32 v{11+2*jj}, v9
        v_add_f32 v7, v7, v5
        """)
    for jj in range(4):
        A(f"v_cvt_pk_bf16_f32 v{20+jj}, v{10+2*jj}, v{11+2*jj}")
    A(f"""
    v_lshlrev_b32 v3, 4, v2
    buffer_store_dwordx4 v[20:23], v3, s[24:27], s38 offen
    s_barrier
    s_branch {Lend}
    {Ltw}:
    s_sub_u32 s13, s13, 40
    s_and_b32 s14, s13, 1
    s_lshl_b32 s14, s14, 4                ; 16kh
    s_lshr_b32 s15, s13, 1
    s_and_b32 s15, s15, 3
    s_lshl_b32 s15, s15, 4                ; 16q
    s_cmp_ge_u32 s13, 8
    s_cselect_b32 s36, s14, s15           ; a base
    s_cselect_b32 s37, s15, s14           ; b base
    s_cselect_b32 s39, 0x36000000, 1.0
    v_add_u32 v5, s36, v4
    v_lshl_add_u32 v6, v3, 2, s37
    v_cvt_f32_u32 v5, v5
    v_mul_f32 v5, 0x3a000000, v5          ; a/2048
    v_cvt_f32_u32 v6, v6
    v_mul_f32 v7, v5, v6
    """)
    for r in range(4):
        A(f"""
        v_cos_f32 v{20+r}, v7
        v_sin_f32 v{24+r}, v7
        v_add_f32 v7, v7, v5
        """)
    for r in range(8):
        A(f"v_mul_f32 v{20+r}, s39, v{20+r}")
    A(f"""
    v_lshlrev_b32 v3, 5, v2
    s_lshl_b32 s38, s13, 11
    s_add_u32 s38, s38, 0x{TW1:x}
    buffer_store_dwordx4 v[20:23], v3, s[24:27], s38 offen
    buffer_store_dwordx4 v[24:27], v3, s[24:27], s38 offen offset:16
    s_barrier
    """)
    A(f"{Lend}:")
    P.end()
    A(f"{Lexit}:")
    A("s_endpgm")
    return kernel_desc(name,96,102), f"; @launch kernel={name} grid=(256,1,1) block=(1024,1,1) lds=163840"
```
